```python
import torch

def _softmax(x, axis=-1):
    return torch.softmax(x, dim=axis)
def _gelu(x):
    return torch.nn.functional.gelu(x, approximate="tanh")
def _silu(x):
    return torch.nn.functional.silu(x)
def _sigmoid(x):
    return torch.sigmoid(x)
def _layernorm(x, axis=-1, eps=1e-5):
    m = x.mean(dim=axis, keepdim=True)
    v = x.var(dim=axis, keepdim=True, unbiased=False)
    return (x - m) / torch.sqrt(v + eps)
def _scatter_add(tgt, idx, src, axis=0):
    return tgt.clone().index_add_(axis, idx, src)
def _segment_sum(src, seg, n):
    out = torch.zeros((n,) + src.shape[1:], dtype=src.dtype)
    return out.index_add_(0, seg, src)
def _pad(x, pw):
    flat = tuple(v for pair in reversed(pw) for v in pair)
    return torch.nn.functional.pad(x, flat)

kernel_name = 'interleave_layers__gqa_block_cached__dense_activation_silu__decode'

def setup_inputs():

    _w = (lambda a: (lambda t: t.to(torch.bfloat16) if t.is_floating_point() else t)(torch.as_tensor(a)))
    def _A_setup():
        B, Sq, D = 2, 1, 512
        Hq, Hkv, Sk, Dh = 32, 8, 8192, 128
        assert Hq % Hkv == 0, (Hq, Hkv)
        return {
            "x": _w((lambda *s: torch.randn(*s, dtype=torch.bfloat16) * 0.1)(B, Sq, D)),
            "k_cache": _w((lambda *s: torch.randn(*s, dtype=torch.bfloat16) * 0.8)(B, Hkv, Sk, Dh)),
            "v_cache": _w((lambda *s: torch.randn(*s, dtype=torch.bfloat16) * 3.2)(B, Hkv, Sk, Dh)),
            "wq": _w((lambda *s: torch.randn(*s, dtype=torch.bfloat16) * 0.8)(D, Hq * Dh) * (D ** -0.5)),
            "wo": _w((lambda *s: torch.randn(*s, dtype=torch.bfloat16) * 3.2)(Hq * Dh, D) * ((Hq * Dh) ** -0.5)),
        }
    _A_in = _A_setup()

    def _B_setup():
        B, S, D, F = 2, 1, 512, 1792
        return {
            "x": _w((lambda *s: torch.randn(*s, dtype=torch.bfloat16) * 0.1)(B, S, D)),
            "w1": _w((lambda *s: torch.randn(*s, dtype=torch.bfloat16) * 1.6)(D, F) * (D ** -0.5)),
            "w2": _w((lambda *s: torch.randn(*s, dtype=torch.bfloat16) * 0.4)(F, D) * (F ** -0.5)),
        }
    _B_in = _B_setup()

    return {
        "A_x": _A_in["x"],
        "A_k_cache": _A_in["k_cache"],
        "A_v_cache": _A_in["v_cache"],
        "A_wq": _A_in["wq"],
        "A_wo": _A_in["wo"],
        "B_x": _B_in["x"],
        "B_w1": _B_in["w1"],
        "B_w2": _B_in["w2"],
    }

def reference(A_x, A_k_cache, A_v_cache, A_wq, A_wo, B_x, B_w1, B_w2):
    def _A_ref(x, k_cache, v_cache, wq, wo):
        B, Sq, D = x.shape
        Hq, Dh = 32, 128
        Hkv = k_cache.shape[1]
        rep = Hq // Hkv
        q = (lambda x, *d: x.permute(*d))((x @ wq).reshape(B, Sq, Hq, Dh), 0, 2, 1, 3)
        k = (lambda x, n, axis: torch.repeat_interleave(x, n, dim=axis))(k_cache, rep, axis=1)
        v = (lambda x, n, axis: torch.repeat_interleave(x, n, dim=axis))(v_cache, rep, axis=1)
        scores = torch.einsum("bhqd,bhkd->bhqk", q, k) * (Dh ** -0.5)
        p = _softmax(scores, axis=-1)
        o = torch.einsum("bhqk,bhkd->bhqd", p, v)
        return (lambda x, *d: x.permute(*d))(o, 0, 2, 1, 3).reshape(B, Sq, Hq * Dh) @ wo

    def _B_ref(x, w1, w2):
        h = torch.einsum("bsd,df->bsf", x, w1)
        h = _silu(h)
        out = torch.einsum("bsf,fd->bsd", h, w2)
        return out

    x = A_x
    x = x + _A_ref(_layernorm(x, axis=-1), A_k_cache, A_v_cache, A_wq, A_wo)
    x = x + _B_ref(_layernorm(x, axis=-1), B_w1, B_w2)
    x = x + _A_ref(_layernorm(x, axis=-1), A_k_cache, A_v_cache, A_wq, A_wo)
    x = x + _B_ref(_layernorm(x, axis=-1), B_w1, B_w2)
    return x
```

```python
import re

TRANS = ("v_exp_f32", "v_log_f32", "v_rcp_f32", "v_rsq_f32", "v_sqrt_f32", "v_sin_f32", "v_cos_f32")
REG_RE = re.compile(r"^(-|abs\()?([vas])(\d+)\)?$")
RANGE_RE = re.compile(r"^(-)?([vas])\[(\d+):(\d+)\]$")

def regs_of(tok):
    tok = tok.strip()
    m = REG_RE.match(tok)
    if m: return [(m.group(2), int(m.group(3)))]
    m = RANGE_RE.match(tok)
    if m: return [(m.group(2), i) for i in range(int(m.group(3)), int(m.group(4)) + 1)]
    if tok == "vcc": return [("s", "vcc_lo"), ("s", "vcc_hi")]
    if tok in ("vcc_lo", "vcc_hi"): return [("s", tok)]
    if tok == "exec": return [("s", "exec_lo"), ("s", "exec_hi")]
    if tok in ("exec_lo", "exec_hi"): return [("s", tok)]
    if tok == "m0": return [("s", "m0")]
    return []

class Ins:
    def __init__(self, text):
        self.text = text
        t = text.split(";")[0].strip()
        parts = t.split(None, 1)
        self.op = parts[0]
        rest = parts[1] if len(parts) > 1 else ""
        ops = [x.strip() for x in rest.split(",")] if rest else []
        mods = ""
        if ops:
            l = ops[-1].split(None, 1)
        rest2 = re.sub(r"\[(\d+),(\d+),(\d+),(\d+)\]", r"[\1.\2.\3.\4]", rest)
        rest2 = re.sub(r"op_sel(_hi)?:\[[^\]]*\]", "", rest2)
        ops = [x.strip() for x in rest2.split(",")] if rest2 else []
        if ops:
            l = ops[-1].split(None, 1)
            ops[-1] = l[0]
            mods = l[1] if len(l) > 1 else ""
        self.ops = ops
        self.mods = mods
        op = self.op
        self.is_mfma = op.startswith("v_mfma") or op.startswith("v_smfmac")
        self.is_valu = op.startswith("v_") and not self.is_mfma
        self.is_trans = any(op.startswith(x) for x in TRANS)
        self.is_dpp = "_dpp" in op or any(k in mods for k in ("row_ror", "row_shr", "row_shl", "quad_perm", "row_bcast", "row_mirror", "row_half_mirror", "wave_"))
        self.is_perml = op.startswith("v_permlane")
        self.is_rdlane = op.startswith("v_readlane") or op.startswith("v_readfirstlane")
        self.is_vmem = op.startswith("buffer_") or op.startswith("global_") or op.startswith("flat_")
        self.is_ds = op.startswith("ds_")
        self.is_salu = op.startswith("s_")
        self.is_ldsdma = self.is_vmem and (re.search(r"\blds\b", mods) is not None or "load_lds" in op)
        R = [regs_of(o) for o in ops]
        self.w, self.r = [], []
        self.A = self.B = self.C = self.D = []
        if self.is_mfma:
            self.D = R[0]; self.A = R[1]; self.B = R[2]
            if op.startswith("v_smfmac"):
                self.C = R[0]; self.r = R[1] + R[2] + R[3] + R[0]
            else:
                self.C = R[3]; self.r = R[1] + R[2] + R[3]
            self.w = R[0]
            self.passes = 8 if "32x32" in op else 4
        elif self.is_valu:
            if op.startswith("v_cmp"):
                self.w = R[0]; self.r = sum(R[1:], [])
            elif self.is_perml:
                self.w = R[0] + R[1]; self.r = R[0] + R[1]
            elif op.startswith("v_add_co") or op.startswith("v_sub_co") or op.startswith("v_addc_co"):
                self.w = R[0] + R[1]; self.r = sum(R[2:], [])
            else:
                self.w = R[0]; self.r = sum(R[1:], [])
                if op.startswith("v_fmac") or op.startswith("v_dot2c") or self.is_dpp or op.startswith("v_writelane"):
                    self.r = self.r + R[0]
                if op.startswith("v_cndmask") and len(ops) == 3:
                    self.r = self.r + regs_of("vcc")
        elif self.is_vmem:
            if "store" in op:
                self.r = sum(R, [])
                if op.startswith("buffer_"): self.data = R[0]
                else: self.data = R[1]
            elif self.is_ldsdma:
                self.r = sum(R, []) + [("s", "m0")]
            elif "atomic" in op:
                self.r = sum(R, [])
            else:
                self.w = R[0]; self.r = sum(R[1:], [])
        elif self.is_ds:
            if "read" in op or "bpermute" in op or "swizzle" in op or "permute" in op:
                self.w = R[0]; self.r = sum(R[1:], [])
            else:
                self.r = sum(R, [])
        elif self.is_salu:
            if op.startswith("s_cmp") or op.startswith("s_cbranch") or op in ("s_branch", "s_barrier", "s_waitcnt", "s_nop", "s_endpgm", "s_setprio", "s_sleep") or op.startswith("s_bitcmp"):
                self.r = sum(R, [])
            else:
                self.w = R[0] if R else []; self.r = sum(R[1:], [])
                if "saveexec" in op: self.w = self.w + regs_of("exec")
        self.wide_store = self.is_vmem and "store" in op and ("x3" in op or "x4" in op)

    def states(self):
        if self.op == "s_nop": return int(self.ops[0], 0) + 1
        return 1

def need(p, c):
    n = 0
    pw = set(p.w); cr = set(c.r); cw = set(c.w)
    if p.is_valu:
        vw = {x for x in pw if x[0] in "va"}
        sw = {x for x in pw if x[0] == "s"}
        if vw & cr:
            if c.is_mfma: n = max(n, 2)
            if c.is_dpp or c.is_perml: n = max(n, 2)
            if c.is_rdlane: n = max(n, 1)
            if p.is_trans and c.is_valu and not c.is_trans: n = max(n, 1)
            if p.is_trans and (c.is_vmem or c.is_ds): n = max(n, 1)
        if sw & cr:
            if c.is_valu or c.is_mfma: n = max(n, 2)
            if c.is_rdlane or c.op.startswith("v_writelane"): n = max(n, 4)
            if c.is_vmem: n = max(n, 5)
            if c.is_salu: n = max(n, 1)
    if p.is_mfma:
        P = p.passes
        D = set(p.D)
        if c.is_mfma:
            if D & (set(c.A) | set(c.B)): n = max(n, P + 4)
            if c.op.startswith("v_smfmac") and D & set(regs_of(c.ops[3])): n = max(n, P + 4)
            if D & set(c.C):
                if c.C == p.D and c.passes == P: pass
                else: n = max(n, P + 2)
            elif D & set(c.D): n = max(n, P + 4)
        else:
            if D & (cr | cw): n = max(n, P + 4)
        if c.is_valu and set(p.C) & cw: n = max(n, P - 1)
    if p.is_salu and ("s", "m0") in pw and c.is_ldsdma: n = max(n, 1)
    if p.wide_store and (set(p.data) & cw): n = max(n, 2)
    return n

class Asm:
    def __init__(self):
        self.lines = []
        self.hist = []
        self.fwd = {}
        self.nops = 0
    def raw(self, s):
        self.lines.append(s)
    def _advance(self, k):
        self.hist = [(i, d + k) for (i, d) in self.hist if d + k < 24]
    def __call__(self, text):
        for t in text.split("\n"):
            t = t.strip()
            if not t or t.startswith(";"):
                if t: self.lines.append("    " + t)
                continue
            self.ins(t)
    def label(self, name):
        for snap in self.fwd.pop(name, []):
            self.hist = self.hist + snap
        self.lines.append(name + ":")
        self.seen = getattr(self, "seen", set()); self.seen.add(name)
    def ins(self, t):
        if t.endswith(":"):
            return self.label(t[:-1])
        c = Ins(t)
        n = 0
        for (p, d) in self.hist:
            n = max(n, need(p, c) - d)
        isbr = c.op.startswith("s_cbranch") or c.op == "s_branch"
        if isbr and c.ops[0] in getattr(self, "seen", set()):
            for (p, d) in self.hist:
                worst = (p.passes + 4) if p.is_mfma else (5 if (p.is_valu and any(x[0] == "s" for x in p.w)) else (2 if (p.is_valu or p.wide_store) else 0))
                n = max(n, worst - d - 1)
        while n > 0:
            k = min(n, 16)
            self.lines.append(f"    s_nop {k-1}")
            self.nops += 1
            self._advance(k)
            n -= k
        self.lines.append("    " + t)
        self._advance(c.states())
        self.hist.append((c, 0))
        if isbr and c.ops[0] not in getattr(self, "seen", set()):
            self.fwd.setdefault(c.ops[0], []).append(list(self.hist))
        if c.op == "s_branch" or c.op == "s_endpgm":
            self.hist = []
    def text(self):
        assert not self.fwd, self.fwd.keys()
        return "\n".join(self.lines) + "\n"
```

```python
import sys
from emit import Asm

NAME = "interleave_layers__gqa_block_cached__dense_activation_silu__decode_kernel"

LSTRIDE = 0x200000
RQ, RA, RML, RO, RF2, RF1 = 0x000000, 0x080000, 0x100000, 0x110000, 0x130000, 0x150000
E_OFF = 0xF000
TS_OFF = 0x800000
ML = 0
QB = ML + 256
XB = QB + 4 * 272
HB = XB + 3 * 144
MODE = HB + 3 * 144
OS = 2304
OP = 4608
WQ = OP + 16384
WO = WQ + 16384
W1 = WO + 16384
W2 = W1 + 8192
LDS_BYTES = W2 + 8192
assert MODE + 4 <= OS and OS % 256 == 0 and OP % 256 == 0
assert QB % 16 == 0 and XB % 16 == 0 and HB % 16 == 0 and OS % 16 == 0

sW, sG, sC, sB, sS, sBETA, sSIG = "s3", "s25", "s26", "s27", "s40", "s41", "s42"
sE, sTAG, sMASK, sFAST, sLAYER, sCNT, sXCC = "s24", "s43", "s44", "s45", "s46", "s47", "s48"
sLB = "s[50:51]"; sLB2 = "s[52:53]"
sPERM0, sPERM1 = "s54", "s55"
sM2 = "s[56:57]"
sT0, sT1, sT2, sT3 = "s58", "s59", "s60", "s61"
sHMASK = "s62"
sK4 = ["s64", "s65", "s66", "s67"]
STAMP0 = 68

vLANE, vTAG, vX = "v1", "v2", "v3"
vCS0, vCS1 = "v4", "v5"
ONES = "v[6:9]"
aQG, aQS, aRA, aRML, aOG, aOML, aRO, aXG = "v10", "v11", "v12", "v13", "v14", "v15", "v16", "v17"
aF1S, aSTW, aF2G, aF2T, aF2S, aQW = "v18", "v19", "v20", "v21", "v22", "v23"
lQW, lQR, lOPW, lL4, lMLR, lXW, lXR, lTR128 = "v24", "v25", "v26", "v27", "v28", "v29", "v30", "v31"
vST = "v63"
T = 32
X, R0, R1, ACC = 64, 96, 128, 160

C_SCALE = 1.4426950408889634 / (128 ** 0.5)
import struct
def fbits(f): return "0x%08x" % struct.unpack("<I", struct.pack("<f", f))[0]
def vr(b, n=4): return f"v[{b}:{b+n-1}]"
def ar(b, n=4): return f"a[{b}:{b+n-1}]"

SPIN = 40000

def gen(diag=False):
    a = Asm()
    ool = []
    nlab = [0]
    def lab(p):
        nlab[0] += 1
        return f"L{p}{nlab[0]}"
    stamps = []
    def stamp(name):
        if diag:
            i = len(stamps); stamps.append(name)
            assert i < 16
            a(f"s_memrealtime s[{STAMP0+2*i}:{STAMP0+2*i+1}]")
    def flush_stamps():
        if diag:
            a("s_waitcnt lgkmcnt(0)")
            a(f"s_lshl_b32 {sT0}, {sLAYER}, 4")
            for i in range(16):
                a(f"s_add_u32 {sT1}, {sT0}, {i}")
                a(f"s_mov_b32 m0, {sT1}")
                a(f"v_writelane_b32 {vST}, s{STAMP0+2*i}, m0")
    def intra_stores(stores):
        l1, l2 = lab("slow"), lab("back")
        a(f"s_cmp_eq_u32 {sFAST}, 0")
        a(f"s_cbranch_scc1 {l1}")
        for s in stores: a(s)
        a(f"{l2}:")
        ool.append((l1, l2, stores))
    def tag(dst, src): a(f"v_and_or_b32 {dst}, {src}, {sMASK}, {vTAG}")
    def check(words, tmp):
        ws = list(words)
        if len(ws) % 2: ws.append(ws[-1])
        parts = []
        for i in range(0, len(ws), 2):
            d = f"v{tmp + i // 2}"
            a(f"v_bitop3_b32 {d}, {ws[i]}, {ws[i+1]}, {vTAG} bitop3:0x7e")
            parts.append(d)
        while len(parts) > 1:
            if len(parts) >= 3:
                a(f"v_or3_b32 {parts[0]}, {parts[0]}, {parts[1]}, {parts[2]}"); parts = [parts[0]] + parts[3:]
            else:
                a(f"v_or_b32 {parts[0]}, {parts[0]}, {parts[1]}"); parts = [parts[0]]
        a(f"v_and_b32 {parts[0]}, 0xff, {parts[0]}")
        a(f"v_cmp_ne_u32 vcc, 0, {parts[0]}")
    def poll(loads, words, tmp):
        lp, lk = lab("poll"), lab("ok")
        a(f"s_mov_b32 {sCNT}, {SPIN}")
        a(f"{lp}:")
        for l in loads: a(l)
        a("s_waitcnt vmcnt(0)")
        check(words, tmp)
        a(f"s_cbranch_vccz {lk}")
        a(f"s_sub_u32 {sCNT}, {sCNT}, 1")
        a(f"s_cbranch_scc0 {lp}")
        a(f"{lk}:")
    def treduce(v0, v1, v2, v3):
        a(f"v_permlane32_swap_b32 {v0}, {v2}")
        a(f"v_permlane32_swap_b32 {v1}, {v3}")
        a(f"v_add_f32 {v0}, {v0}, {v2}")
        a(f"v_add_f32 {v1}, {v1}, {v3}")
        a(f"v_permlane16_swap_b32 {v0}, {v1}")
        a(f"v_add_f32 {v0}, {v0}, {v1}")
        a(f"v_add_f32_dpp {v0}, {v0}, {v0} row_ror:8 row_mask:0xf bank_mask:0xf")
    def ln_stats(st, mean, rstd, scale=None):
        s0, s1, s2, s3 = (f"v{st+i}" for i in range(4))
        a(f"v_add_f32 {s0}, {s0}, {s1}")
        a(f"v_add_f32 {s2}, {s2}, {s3}")
        for r in (1, 2, 4):
            a(f"v_add_f32_dpp {s0}, {s0}, {s0} row_ror:{r} row_mask:0xf bank_mask:0xf")
            a(f"v_add_f32_dpp {s2}, {s2}, {s2} row_ror:{r} row_mask:0xf bank_mask:0xf")
        a(f"v_mul_f32 {mean}, {fbits(1/512)}, {s2}")
        a(f"v_mul_f32 {s0}, {fbits(1/512)}, {s0}")
        a(f"v_fma_f32 {s0}, -{mean}, {mean}, {s0}")
        a(f"v_max_f32 {s0}, 0, {s0}")
        a(f"v_add_f32 {s0}, {fbits(1e-5)}, {s0}")
        a(f"v_rsq_f32 {rstd}, {s0}")
        if scale is not None:
            a(f"v_mul_f32 {rstd}, {fbits(scale)}, {rstd}")
    def stats_words(D, o):
        a("s_mov_b64 vcc, 2")
        a(f"v_cndmask_b32 v{o+1}, v{D}, v{D+1}, vcc")
        tag(f"v{o}", f"v{o+1}")
        tag(f"v{o+2}", f"v{D+2}")
        a(f"v_sub_f32 v{o+1}, v{o+1}, v{o}")
        a(f"v_sub_f32 v{o+3}, v{D+2}, v{o+2}")
        tag(f"v{o+1}", f"v{o+1}")
        tag(f"v{o+3}", f"v{o+3}")
    def trread(dst, addr, off, pitch):
        a(f"ds_read_b64_tr_b16 {vr(dst,2)}, {addr} offset:{off}")
        a(f"ds_read_b64_tr_b16 {vr(dst+2,2)}, {addr} offset:{off + 4*pitch}")

    a.raw(f"; @launch grid=(256,1,1) block=(512,1,1) lds={LDS_BYTES}")
    a.raw('.amdgcn_target "amdgcn-amd-amdhsa--gfx950"')
    a.raw(".text")
    a.raw(f".globl {NAME}")
    a.raw(".p2align 8")
    a.raw(f".type {NAME},@function")
    a.raw(f"{NAME}:")
    if diag: a("s_memrealtime s[100:101]")
    a("s_cmp_ge_u32 s2, 256")
    a("s_cbranch_scc1 Lexit")
    a("s_load_dwordx16 s[4:19], s[0:1], 0")
    a("s_load_dwordx2 s[20:21], s[0:1], 64")
    a("s_load_dwordx2 s[22:23], s[0:1], 80")
    a(f"v_and_b32 {vLANE}, 63, v0")
    a("v_lshrrev_b32 v32, 6, v0")
    a(f"v_readfirstlane_b32 {sW}, v32")
    a(f"s_and_b32 {sG}, s2, 7")
    a(f"s_lshr_b32 {sC}, s2, 3")
    a(f"s_lshr_b32 {sB}, {sC}, 4")
    a(f"s_and_b32 {sS}, {sC}, 15")
    a(f"s_and_b32 {sBETA}, {sC}, 7")
    a(f"s_lshr_b32 {sSIG}, {sC}, 3")
    for i in range(4): a(f"s_mov_b32 {sK4[i]}, {4096*i}")
    a(f"s_lshl_b32 {sT0}, {sB}, 3")
    a(f"s_add_u32 {sT0}, {sT0}, {sG}")
    a(f"s_lshl_b32 {sT0}, {sT0}, 21")
    a(f"s_lshl_b32 {sT1}, {sS}, 17")
    a(f"s_add_u32 {sT0}, {sT0}, {sT1}")
    a(f"s_lshl_b32 {sT1}, {sW}, 14")
    a(f"s_add_u32 {sT0}, {sT0}, {sT1}")
    a(f"v_and_b32 v33, 15, {vLANE}")
    a(f"v_lshrrev_b32 v34, 4, {vLANE}")
    a("v_lshlrev_b32 v35, 8, v33")
    a("v_lshl_add_u32 v35, v34, 4, v35")
    a("v_lshlrev_b32 v36, 4, v33")
    a("v_lshl_add_u32 v36, v34, 10, v36")
    a("s_waitcnt lgkmcnt(0)")
    a(f"s_load_dword {sE}, s[22:23], {hex(E_OFF)}")
    a(f"s_add_u32 s28, s6, {sT0}")
    a("s_addc_u32 s29, s7, 0")
    a("s_mov_b32 s30, 16384")
    a("s_mov_b32 s31, 0x20000")
    a(f"s_add_u32 s32, s8, {sT0}")
    a("s_addc_u32 s33, s9, 0")
    a("s_mov_b32 s34, 16384")
    a("s_mov_b32 s35, 0x20000")
    a("s_mov_b32 s39, 0x20000")
    a(f"s_cmp_gt_u32 {sW}, 3")
    a("s_cbranch_scc1 Lkv")
    a(f"s_lshr_b32 {sT1}, {sW}, 1")
    a(f"s_lshl_b32 {sT1}, {sT1}, 9")
    a(f"s_and_b32 {sT2}, {sW}, 1")
    a(f"s_lshl_b32 {sT2}, {sT2}, 5")
    a(f"s_add_u32 {sT1}, {sT1}, {sT2}")
    a(f"s_lshl_b32 {sT2}, {sBETA}, 6")
    a(f"s_add_u32 {sT1}, {sT1}, {sT2}")
    a(f"v_and_b32 v37, 7, {vLANE}")
    a("v_lshl_add_u32 v37, v37, 2, v34")
    a(f"v_add_u32 v37, {sT1}, v37")
    a("v_lshlrev_b32 v37, 1, v37")
    a(f"global_load_ushort {vX}, v37, s[4:5]")
    a(f"v_lshrrev_b32 v38, 3, {vLANE}")
    a(f"v_and_b32 v39, 7, {vLANE}")
    a(f"s_cmp_eq_u32 {sW}, 0")
    a("s_cbranch_scc1 Lw0")
    a(f"s_cmp_eq_u32 {sW}, 3")
    a("s_cbranch_scc1 Lw3")
    a("s_mov_b32 s36, s12")
    a("s_mov_b32 s37, s13")
    a(f"s_mov_b32 s38, {4096*512*2}")
    a("v_and_b32 v40, 3, v38")
    a("v_lshlrev_b32 v40, 17, v40")
    a(f"v_lshrrev_b32 v41, 5, {vLANE}")
    a("v_lshl_add_u32 v40, v41, 13, v40")
    a("v_lshl_add_u32 v40, v39, 4, v40")
    a(f"s_lshl_b32 {sT1}, {sG}, 9")
    a(f"s_lshl_b32 {sT2}, {sSIG}, 1")
    a(f"s_add_u32 {sT1}, {sT1}, {sT2}")
    a(f"s_add_u32 {sT1}, {sT1}, {sW}")
    a(f"s_sub_u32 {sT1}, {sT1}, 1")
    a(f"s_lshl_b32 {sT1}, {sT1}, 10")
    a(f"s_lshl_b32 {sT2}, {sBETA}, 7")
    a(f"s_add_u32 {sT1}, {sT1}, {sT2}")
    a(f"s_lshl_b32 {sT2}, {sW}, 13")
    a(f"s_add_u32 {sT2}, {sT2}, {WO - 8192}")
    for ii in range(8):
        a(f"s_mov_b32 m0, {sT2}")
        a(f"buffer_load_dwordx4 v40, s[36:39], {sT1} offen nt lds")
        if ii < 7:
            a(f"s_add_u32 {sT1}, {sT1}, {16*1024}")
            a(f"s_add_u32 {sT2}, {sT2}, 1024")
    a("s_branch Lkv")
    a("Lw3:")
    a("s_mov_b32 s36, s16")
    a("s_mov_b32 s37, s17")
    a(f"s_mov_b32 s38, {512*1792*2}")
    a("v_mul_u32_u24 v40, 3584, v38")
    a("v_lshl_add_u32 v40, v39, 4, v40")
    a(f"s_mul_i32 {sT1}, {sBETA}, {64*3584}")
    a(f"s_mul_i32 {sT2}, {sG}, 448")
    a(f"s_add_u32 {sT1}, {sT1}, {sT2}")
    a(f"s_lshl_b32 {sT2}, {sSIG}, 7")
    a(f"s_add_u32 {sT1}, {sT1}, {sT2}")
    for ii in range(8):
        a(f"s_mov_b32 m0, {W1 + 1024*ii}")
        a(f"buffer_load_dwordx4 v40, s[36:39], {sT1} offen nt lds")
        if ii < 7: a(f"s_add_u32 {sT1}, {sT1}, {8*3584}")
    a("s_mov_b32 s36, s18")
    a("s_mov_b32 s37, s19")
    a("v_lshlrev_b32 v41, 10, v38")
    a("v_lshl_add_u32 v41, v39, 4, v41")
    a(f"s_mul_i32 {sT1}, {sG}, {224*1024}")
    a(f"s_lshl_b32 {sT2}, {sSIG}, 16")
    a(f"s_add_u32 {sT1}, {sT1}, {sT2}")
    a(f"s_lshl_b32 {sT2}, {sBETA}, 7")
    a(f"s_add_u32 {sT1}, {sT1}, {sT2}")
    for ii in range(8):
        a(f"s_mov_b32 m0, {W2 + 1024*ii}")
        a(f"buffer_load_dwordx4 v41, s[36:39], {sT1} offen nt lds")
        if ii < 7: a(f"s_add_u32 {sT1}, {sT1}, {8*1024}")
    a("s_branch Lkv")
    a("Lw0:")
    a("v_min_u32 v40, 1, v33")
    a("v_lshlrev_b32 v40, 10, v40")
    a("v_lshl_add_u32 v40, v34, 4, v40")
    a(f"s_lshl_b32 {sT1}, {sBETA}, 7")
    a(f"v_add_u32 v40, {sT1}, v40")
    a("global_load_dwordx4 v[54:57], v40, s[4:5]")
    a("global_load_dwordx4 v[58:61], v40, s[4:5] offset:64")
    a("s_mov_b32 s36, s10")
    a("s_mov_b32 s37, s11")
    a(f"s_mov_b32 s38, {512*4096*2}")
    a("v_lshlrev_b32 v41, 13, v34")
    a("v_lshl_add_u32 v41, v33, 4, v41")
    a(f"s_lshl_b32 {sT1}, {sBETA}, 19")
    a(f"s_lshl_b32 {sT2}, {sG}, 10")
    a(f"s_add_u32 {sT1}, {sT1}, {sT2}")
    a(f"s_lshl_b32 {sT2}, {sSIG}, 8")
    a(f"s_add_u32 {sT1}, {sT1}, {sT2}")
    for ii in range(16):
        a(f"s_mov_b32 m0, {WQ + 1024*ii}")
        a(f"buffer_load_dwordx4 v41, s[36:39], {sT1} offen nt lds")
        if ii < 15: a(f"s_add_u32 {sT1}, {sT1}, {4*8192}")
    a("Lkv:")
    for t in range(4):
        for j in range(4):
            a(f"buffer_load_dwordx4 {ar(16*t+4*j)}, v35, s[28:31], {sK4[t]} offen offset:{64*j} nt")
    for u in range(2):
        for jj in range(8):
            off = (32*u + 16*(jj >> 2) + (jj & 3)) * 256
            a(f"buffer_load_dwordx4 {vr((R0 if u == 0 else R1) + 4*jj)}, v36, s[32:35], {sK4[off // 4096]} offen offset:{off % 4096} nt")
    if diag:
        a(f"v_mov_b32 {vST}, 0")
        a("s_memrealtime s[98:99]")
    a("s_waitcnt lgkmcnt(0)")
    if diag:
        a(f"v_writelane_b32 {vST}, s100, 32")
        a(f"v_writelane_b32 {vST}, s98, 33")
    a(f"s_and_b32 {sTAG}, {sE}, 0xff")
    a(f"s_cmp_eq_u32 {sTAG}, 0xff")
    a(f"s_cselect_b32 {sTAG}, 0, {sTAG}")
    a(f"s_add_u32 {sTAG}, {sTAG}, 1")
    a(f"v_mov_b32 {vTAG}, {sTAG}")
    a(f"s_mov_b32 {sMASK}, 0xffffff00")
    a(f"s_mov_b32 {sLAYER}, 0")
    a(f"s_mov_b32 {sFAST}, 0")
    a(f"s_getreg_b32 {sXCC}, hwreg(HW_REG_XCC_ID)")
    a(f"s_and_b32 {sXCC}, {sXCC}, 0xf")
    a("s_mov_b32 s50, s22")
    a("s_mov_b32 s51, s23")
    a(f"s_add_u32 s52, s22, {RF2 - RO}")
    a("s_addc_u32 s53, s23, 0")
    a(f"s_mov_b32 {sPERM0}, 0x05040100")
    a(f"s_mov_b32 {sPERM1}, 0x07060302")
    a("s_mov_b32 s56, 0x00040004")
    a("s_mov_b32 s57, 0x00040004")
    for i in range(4): a(f"v_mov_b32 v{6+i}, 0x3f803f80")
    a(f"s_and_b32 {sT1}, {sW}, 1")
    a(f"s_lshl_b32 {sT1}, {sT1}, 2")
    a(f"s_add_u32 {sT1}, {sT1}, {sSIG}")
    a(f"s_cmp_eq_u32 {sT1}, 7")
    a(f"s_cselect_b32 {sHMASK}, 0, -1")
    a(f"v_lshlrev_b32 {lL4}, 2, {vLANE}")
    a(f"v_and_b32 v37, 7, {vLANE}")
    a(f"v_lshrrev_b32 v38, 3, {vLANE}")
    a(f"s_lshl_b32 {sT0}, {sG}, 16")
    a(f"v_and_b32 v39, 31, {vLANE}")
    a(f"v_lshrrev_b32 v40, 5, {vLANE}")
    a("v_lshlrev_b32 v41, 4, v39")
    a("v_lshl_add_u32 v41, v40, 13, v41")
    a(f"s_lshl_b32 {sT1}, {sB}, 14")
    a(f"s_add_u32 {sT1}, {sT1}, {sT0}")
    a(f"s_lshl_b32 {sT2}, {sW}, 9")
    a(f"s_add_u32 {sT1}, {sT1}, {sT2}")
    a(f"s_add_u32 {sT1}, {sT1}, {RQ + 4096}")
    a(f"v_add_u32 {aQG}, {sT1}, v41")
    a(f"s_lshl_b32 {sT1}, {sB}, 4")
    a(f"s_add_u32 {sT1}, {sT1}, {sT0}")
    a(f"s_add_u32 {sT1}, {sT1}, {RQ + 0xC000}")
    a(f"v_lshl_add_u32 {aQS}, v37, 5, {sT1}")
    a("v_lshlrev_b32 v41, 3, v39")
    a("v_lshl_add_u32 v41, v40, 2, v41")
    a(f"s_mul_i32 {sT1}, {sW}, 272")
    a(f"s_add_u32 {sT1}, {sT1}, {QB}")
    a(f"v_add_u32 {lQW}, {sT1}, v41")
    a(f"v_and_b32 v41, 3, {vLANE}")
    a("v_mul_u32_u24 v42, 272, v41")
    a("v_lshl_add_u32 v42, v34, 4, v42")
    a(f"v_add_u32 {lQR}, {QB}, v42")
    a(f"s_lshl_b32 {sT1}, {sW}, 11")
    a(f"s_add_u32 {sT1}, {sT1}, {OP}")
    a(f"v_lshl_add_u32 {lOPW}, v33, 4, {sT1}")
    a(f"v_lshlrev_b32 {lMLR}, 6, v41")
    a(f"v_add_u32 {lMLR}, {ML}, {lMLR}")
    a(f"s_lshl_b32 {sT1}, {sC}, 11")
    a(f"s_add_u32 {sT1}, {sT1}, {sT0}")
    a(f"s_lshl_b32 {sT2}, {sW}, 8")
    a(f"s_add_u32 {sT1}, {sT1}, {sT2}")
    a(f"s_add_u32 {sT1}, {sT1}, {RA}")
    a(f"v_add_u32 {aRA}, {sT1}, {lL4}")
    a(f"s_lshl_b32 {sT1}, {sG}, 10")
    a(f"s_lshl_b32 {sT2}, {sC}, 5")
    a(f"s_add_u32 {sT2}, {sT2}, {sT1}")
    a(f"s_add_u32 {sT2}, {sT2}, {RML}")
    a(f"v_lshl_add_u32 {aRML}, {vLANE}, 3, {sT2}")
    a(f"s_lshr_b32 {sT2}, {sW}, 2")
    a(f"s_lshl_b32 {sT3}, {sT2}, 9")
    a(f"s_add_u32 {sT1}, {sT1}, {sT3}")
    a(f"s_add_u32 {sT1}, {sT1}, {RML}")
    a("v_lshlrev_b32 v42, 5, v33")
    a("v_lshl_add_u32 v42, v34, 3, v42")
    a(f"v_add_u32 {aOML}, {sT1}, v42")
    a(f"s_lshl_b32 {sT1}, {sT2}, 15")
    a(f"s_add_u32 {sT1}, {sT1}, {sT0}")
    a(f"s_lshl_b32 {sT2}, {sSIG}, 9")
    a(f"s_add_u32 {sT1}, {sT1}, {sT2}")
    a(f"s_and_b32 {sT2}, {sW}, 3")
    a(f"s_lshl_b32 {sT2}, {sT2}, 7")
    a(f"s_add_u32 {sT1}, {sT1}, {sT2}")
    a(f"s_add_u32 {sT1}, {sT1}, {RA}")
    a("v_lshlrev_b32 v42, 11, v33")
    a("v_lshl_add_u32 v42, v34, 5, v42")
    a(f"v_add_u32 {aOG}, {sT1}, v42")
    a(f"s_lshl_b32 {sT1}, {sG}, 2")
    a(f"s_add_u32 {sT1}, {sT1}, {sSIG}")
    a(f"s_lshl_b32 {sT3}, {sT1}, 13")
    a(f"s_lshl_b32 {sT1}, {sT1}, 9")
    a(f"s_lshl_b32 {sT2}, {sBETA}, 14")
    a(f"s_add_u32 {sT1}, {sT1}, {sT2}")
    a(f"s_lshl_b32 s63, {sW}, 8")
    a(f"s_add_u32 s63, s63, {sT1}")
    a(f"s_add_u32 s63, s63, {RO}")
    a(f"v_add_u32 {aRO}, s63, {lL4}")
    a(f"s_and_b32 s63, {sW}, 3")
    a("s_lshl_b32 s63, s63, 6")
    a(f"s_add_u32 {sT1}, {sT1}, s63")
    a(f"s_add_u32 {sT1}, {sT1}, {RF2}")
    a(f"v_lshl_add_u32 {aF2S}, v33, 2, {sT1}")
    a(f"s_lshl_b32 {sT1}, {sBETA}, 8")
    a(f"s_add_u32 {sT1}, {sT1}, {sT3}")
    a(f"s_add_u32 {sT1}, {sT1}, s63")
    a(f"s_add_u32 {sT1}, {sT1}, {RF1 + 2048}")
    a(f"v_lshl_add_u32 {aF1S}, v33, 2, {sT1}")
    a(f"s_lshr_b32 {sT1}, {sW}, 1")
    a(f"s_and_b32 s63, {sW}, 1")
    a("v_lshlrev_b32 v42, 4, v37")
    a("v_lshl_add_u32 v43, v38, 11, v42")
    a(f"s_lshl_b32 s49, {sW}, 7")
    a(f"s_add_u32 {sT2}, {sT2}, s49")
    a(f"s_add_u32 {sT2}, {sT2}, {RO}")
    a(f"v_add_u32 {aXG}, {sT2}, v43")
    a("v_lshl_add_u32 v43, v38, 8, v42")
    a("s_lshl_b32 s49, s63, 7")
    a(f"s_add_u32 {sT2}, {sT3}, s49")
    a(f"s_add_u32 {sT2}, {sT2}, {RF1 + 2048}")
    a(f"v_add_u32 {aF2G}, {sT2}, v43")
    a(f"s_lshl_b32 s49, {sT1}, 4")
    a(f"s_add_u32 {sT2}, {sT3}, s49")
    a(f"s_add_u32 {sT2}, {sT2}, {RF1 + 0x1800}")
    a(f"v_lshl_add_u32 {aF2T}, v37, 5, {sT2}")
    a("v_lshl_add_u32 v43, v37, 2, v34")
    a("v_lshlrev_b32 v43, 1, v43")
    a(f"s_mul_i32 {sT2}, {sT1}, 144")
    a("s_lshl_b32 s49, s63, 6")
    a(f"s_add_u32 {sT2}, {sT2}, s49")
    a(f"s_add_u32 {sT2}, {sT2}, {XB}")
    a(f"v_add_u32 {lXW}, {sT2}, v43")
    a("v_min_u32 v43, 2, v33")
    a("v_mul_u32_u24 v43, 144, v43")
    a("v_lshl_add_u32 v43, v34, 4, v43")
    a(f"v_add_u32 {lXR}, {XB}, v43")
    a(f"v_bfe_u32 v43, {vLANE}, 2, 2")
    a("v_lshl_add_u32 v43, v34, 3, v43")
    a("v_lshlrev_b32 v52, 3, v41")
    a(f"v_lshl_add_u32 {lTR128}, v43, 7, v52")
    a("v_lshl_add_u32 v52, v43, 8, v52")
    a(f"s_add_u32 {sT2}, {sT3}, {RF1 + 0x1800}")
    a(f"s_add_u32 s49, {sT0}, {RQ + 0xC000}")
    a(f"s_cmp_eq_u32 {sW}, 4")
    a(f"s_cselect_b32 {sT2}, {sT2}, s49")
    a(f"s_lshl_b32 s49, {sBETA}, 5")
    a(f"s_add_u32 {sT2}, {sT2}, s49")
    a(f"v_lshl_add_u32 {aSTW}, {vLANE}, 4, {sT2}")
    a(f"s_lshl_b32 {sT1}, {sBETA}, 11")
    a(f"s_add_u32 {sT1}, {sT1}, {sT0}")
    a(f"s_lshl_b32 {sT2}, {sSIG}, 9")
    a(f"s_add_u32 {sT1}, {sT1}, {sT2}")
    a(f"s_lshl_b32 {sT2}, {sW}, 6")
    a(f"s_add_u32 {sT1}, {sT1}, {sT2}")
    a(f"s_add_u32 {sT1}, {sT1}, {RQ}")
    a(f"v_lshl_add_u32 {aQW}, v33, 2, {sT1}")
    a(f"s_cmp_eq_u32 {sW}, 7")
    a("s_cbranch_scc0 Lnoones")
    a("s_mov_b32 exec_hi, 0")
    a(f"ds_write_b32 {lL4}, v6 offset:{XB + 288}")
    a(f"ds_write_b32 {lL4}, v6 offset:{HB + 288}")
    a("s_mov_b64 exec, -1")
    a("Lnoones:")
    a(f"s_cmp_gt_u32 {sW}, 3")
    a("s_cbranch_scc1 LB1")
    a("s_waitcnt vmcnt(32)")
    a(f"v_lshlrev_b32 {vX}, 16, {vX}")
    a(f"s_cmp_eq_u32 {sW}, 0")
    a("s_cbranch_scc0 LAG")
    def opreg(t, j):
        i = 2*t + j
        return (X + 4*i) if i < 8 else (ACC + 4*(i-8))
    for t in range(8):
        for j in range(2):
            trread(opreg(t, j), "v52", WQ + j*32*256 + t*32, 256)
    for i in range(8):
        a(f"v_cndmask_b32 v{54+i}, v{54+i}, v6, {sM2}")
    a("s_waitcnt lgkmcnt(0)")
    A0, A1 = "v[54:57]", "v[58:61]"
    a(f"v_add_u32 v52, 0x4000, {aQW}")
    a(f"v_add_u32 v53, 0x8000, {aQW}")
    for half in range(2):
        for tt in range(4):
            t = 4*half + tt
            a(f"v_mfma_f32_16x16x32_bf16 {vr(32+4*tt)}, {A0}, {vr(opreg(t,0))}, 0")
        for tt in range(4):
            t = 4*half + tt
            a(f"v_mfma_f32_16x16x32_bf16 {vr(32+4*tt)}, {A1}, {vr(opreg(t,1))}, {vr(32+4*tt)}")
        if half == 0:
            a(f"v_mfma_f32_16x16x32_bf16 v[48:51], {A0}, {A0}, 0")
            a(f"v_mfma_f32_16x16x32_bf16 v[48:51], {A1}, {A1}, v[48:51]")
        for tt in range(4):
            for k in range(3): tag(f"v{32+4*tt+k}", f"v{32+4*tt+k}")
        a("s_mov_b64 exec, 0xffff")
        for tt in range(4):
            t = 4*half + tt
            a(f"global_store_dword {aQW}, v{32+4*tt}, {sLB} offset:{64*t} sc1")
            a(f"global_store_dword v52, v{33+4*tt}, {sLB} offset:{64*t} sc1")
            a(f"global_store_dword v53, v{34+4*tt}, {sLB} offset:{64*t} sc1")
        a("s_mov_b64 exec, -1")
    stats_words(48, 32)
    a(f"s_lshl_b32 {sT1}, {sXCC}, 8")
    a(f"s_or_b32 {sT1}, {sT1}, {sTAG}")
    for i in range(4): a(f"v_mov_b32 v{36+i}, {sT1}")
    a(f"s_lshl_b32 {sT1}, {sG}, 16")
    a(f"s_lshl_b32 {sT2}, {sC}, 4")
    a(f"s_add_u32 {sT1}, {sT1}, {sT2}")
    a(f"s_add_u32 {sT1}, {sT1}, {RQ + 0xC100}")
    a(f"v_mov_b32 v40, {sT1}")
    a("s_mov_b64 exec, 1")
    a(f"global_store_dwordx4 v40, v[36:39], {sLB} sc1")
    a("s_mov_b64 exec, 3")
    a(f"s_cmp_eq_u32 {sSIG}, 0")
    a("s_cbranch_scc0 Lq1nost")
    a(f"global_store_dwordx4 {aSTW}, v[32:35], {sLB} sc1")
    a("Lq1nost:")
    a("s_mov_b64 exec, -1")
    a("s_branch LAG")

    a("LOOP:")
    a(f"s_cmp_gt_u32 {sW}, 3")
    a("s_cbranch_scc1 LB1")
    a("LAG:")
    a(f"s_cmp_eq_u32 {sLAYER}, 0")
    a("s_cbranch_scc0 Lag1")
    a(f"s_sub_u32 {sT1}, 2, {sB}")
    a(f"s_lshl_b32 {sT1}, {sT1}, 14")
    a(f"v_add_u32 v{X+20}, {sT1}, {aQG}")
    a(f"s_lshl_b32 {sT1}, {sG}, 16")
    a(f"s_add_u32 {sT1}, {sT1}, {RQ + 0xC100}")
    a(f"v_and_b32 v{X+21}, 31, {vLANE}")
    a(f"v_lshl_add_u32 v{X+21}, v{X+21}, 4, {sT1}")
    csl = [f"global_load_dwordx4 {vr(X+4*i)}, v{X+20}, {sLB} offset:{-4096+2048*i} sc1" for i in range(4)]
    csl.append(f"global_load_dwordx4 {vr(X+16)}, v{X+21}, {sLB} sc1")
    for l in csl: a(l)
    a("Lag1:")
    loads = [f"global_load_dwordx4 v[48:51], {aQS}, {sLB} sc1"]
    loads += [f"global_load_dwordx4 {vr(32+4*i)}, {aQG}, {sLB} offset:{-4096+2048*i} sc1" for i in range(4)]
    poll(loads, ["v32", "v36", "v40", "v44", "v48", "v49", "v50", "v51"], 52)
    a(f"s_cmp_eq_u32 {sLAYER}, 0")
    a("s_cbranch_scc0 Lag2")
    a(f"s_mov_b32 {sCNT}, {SPIN}")
    a("Lagc:")
    check([f"v{X}", f"v{X+4}", f"v{X+8}", f"v{X+12}", f"v{X+16}", f"v{X+17}", f"v{X+18}", f"v{X+19}"], 52)
    a("s_cbranch_vccz Lagd")
    for l in csl: a(l)
    a("s_waitcnt vmcnt(0)")
    a(f"s_sub_u32 {sCNT}, {sCNT}, 1")
    a("s_cbranch_scc0 Lagc")
    a("Lagd:")
    for k in range(4):
        a(f"v_add_f32 v{X+k}, v{X+k}, v{X+4+k}")
        a(f"v_add_f32 v{X+8+k}, v{X+8+k}, v{X+12+k}")
    for k in range(4):
        a(f"v_add_f32 v{X+k}, v{X+k}, v{X+8+k}")
    a(f"v_permlane32_swap_b32 v{X}, v{X+2}")
    a(f"v_permlane32_swap_b32 v{X+1}, v{X+3}")
    a(f"v_add_f32 {vCS0}, v{X}, v{X+2}")
    a(f"v_add_f32 {vCS1}, v{X+1}, v{X+3}")
    a(f"v_lshrrev_b32 v{X+16}, 8, v{X+16}")
    a(f"v_cmp_ne_u32 vcc, {sXCC}, v{X+16}")
    a("s_cmp_eq_u64 vcc, 0")
    a(f"s_cselect_b32 {sT1}, 1, 0")
    a(f"v_mov_b32 v{X+16}, {sT1}")
    a(f"v_mov_b32 v{X+17}, {MODE}")
    a(f"ds_write_b32 v{X+17}, v{X+16}")
    a("Lag2:")
    stamp("AG_got")
    a("v_pk_add_f32 v[32:33], v[32:33], v[36:37]")
    a("v_pk_add_f32 v[34:35], v[34:35], v[38:39]")
    a("v_pk_add_f32 v[40:41], v[40:41], v[44:45]")
    a("v_pk_add_f32 v[42:43], v[42:43], v[46:47]")
    ln_stats(48, "v52", "v53", C_SCALE)
    a("v_pk_add_f32 v[32:33], v[32:33], v[40:41]")
    a("v_pk_add_f32 v[34:35], v[34:35], v[42:43]")
    a("v_permlane32_swap_b32 v32, v34")
    a("v_permlane32_swap_b32 v33, v35")
    a("v_add_f32 v32, v32, v34")
    a("v_add_f32 v33, v33, v35")
    a(f"v_fma_f32 v32, -v52, {vCS0}, v32")
    a(f"v_fma_f32 v33, -v52, {vCS1}, v33")
    a("v_mul_f32 v32, v32, v53")
    a("v_mul_f32 v33, v33, v53")
    a("v_cvt_pk_bf16_f32 v32, v32, v33")
    a(f"ds_write_b32 {lQW}, v32")
    a("LB1:")
    a("s_waitcnt lgkmcnt(0)")
    a("s_barrier")
    stamp("B1")
    Q = ACC; D = ACC + 16
    for j in range(4):
        a(f"ds_read_b128 {vr(Q+4*j)}, {lQR} offset:{64*j}")
    a(f"s_cmp_eq_u32 {sLAYER}, 0")
    a("s_cbranch_scc0 Lam1")
    a(f"v_mov_b32 v32, {MODE}")
    a("ds_read_b32 v32, v32")
    a("s_waitcnt lgkmcnt(0)")
    a(f"v_readfirstlane_b32 {sFAST}, v32")
    a("Lam1:")
    a("s_waitcnt vmcnt(16) lgkmcnt(0)")
    for j in range(4):
        for t in range(4):
            c = "0" if j == 0 else vr(D+4*t)
            a(f"v_mfma_f32_16x16x32_bf16 {vr(D+4*t)}, {ar(16*t+4*j)}, {vr(Q+4*j)}, {c}")
    d = [f"v{D+i}" for i in range(16)]
    a(f"v_max3_f32 v32, {d[0]}, {d[1]}, {d[2]}")
    a(f"v_max3_f32 v33, {d[3]}, {d[4]}, {d[5]}")
    a(f"v_max3_f32 v32, v32, {d[6]}, {d[7]}")
    a(f"v_max3_f32 v33, v33, {d[8]}, {d[9]}")
    a(f"v_max3_f32 v32, v32, {d[10]}, {d[11]}")
    a(f"v_max3_f32 v33, v33, {d[12]}, {d[13]}")
    a(f"v_max3_f32 v32, v32, {d[14]}, {d[15]}")
    a("v_max_f32 v32, v32, v33")
    a("v_mov_b32 v33, v32")
    a("v_permlane32_swap_b32 v32, v33")
    a("v_max_f32 v32, v32, v33")
    a("v_mov_b32 v33, v32")
    a("v_permlane16_swap_b32 v32, v33")
    a("v_max_f32 v44, v32, v33")
    for i in range(16): a(f"v_sub_f32 {d[i]}, {d[i]}, v44")
    for i in range(16): a(f"v_exp_f32 {d[i]}, {d[i]}")
    P = 32
    for i in range(8): a(f"v_cvt_pk_bf16_f32 v{P+i}, {d[2*i]}, {d[2*i+1]}")
    LA = 40
    def perm(src, dst):
        for e in range(8):
            for pp in range(4):
                a(f"v_perm_b32 v{dst+4*e+pp}, v{src+4*(2*pp+1)+(e>>1)}, v{src+4*(2*pp)+(e>>1)}, {sPERM1 if e & 1 else sPERM0}")
    for u in range(2):
        l = lab("np")
        a(f"s_cmp_eq_u32 {sLAYER}, 0")
        a(f"s_cbranch_scc0 {l}")
        a(f"s_waitcnt vmcnt({8 if u == 0 else 0})")
        if u == 0: perm(R0, X)
        else: perm(R1, R0)
        a(f"{l}:")
        Vb = X if u == 0 else R0
        a(f"v_mfma_f32_16x16x32_bf16 {vr(LA)}, {ONES}, {vr(P+4*u)}, {'0' if u == 0 else vr(LA)}")
        for e in range(8):
            a(f"v_mfma_f32_16x16x32_bf16 {vr(ACC+4*e)}, {vr(P+4*u)}, {vr(Vb+4*e)}, {'0' if u == 0 else vr(ACC+4*e)}")
    stamp("PV_issued")
    a(f"s_lshl_b32 {sT1}, {sW}, 3")
    a(f"v_add_u32 v46, {sT1}, {lMLR}")
    a(f"v_mov_b32 v45, v{LA}")
    a("s_mov_b64 exec, 0xf")
    a("ds_write_b64 v46, v[44:45]")
    a("s_mov_b64 exec, 0xffff")
    for e in range(8):
        a(f"ds_write_b128 {lOPW}, {vr(ACC+4*e)} offset:{256*e}")
    a("s_mov_b64 exec, -1")
    a(f"s_lshl_b32 {sT1}, {sW}, 8")
    a(f"v_add_u32 v46, {sT1}, {lL4}")
    a("s_waitcnt lgkmcnt(0)")
    a("s_barrier")
    stamp("B2")
    for i in range(4):
        a(f"ds_read_b128 {vr(R1+4*i)}, {lMLR} offset:{16*i}")
    for i in range(4):
        a(f"ds_read2st64_b32 {vr(32+2*i,2)}, v46 offset0:{OP//256 + 16*i} offset1:{OP//256 + 16*i + 8}")
    a(f"s_and_b32 {sT1}, {sW}, 3")
    a(f"s_lshl_b32 {sT1}, {sT1}, 12")
    a(f"v_add_u32 v47, {sT1}, {lTR128}")
    a("s_waitcnt lgkmcnt(4)")
    m = [f"v{R1+2*w}" for w in range(8)]; lw = [f"v{R1+2*w+1}" for w in range(8)]
    a(f"v_max3_f32 v40, {m[0]}, {m[1]}, {m[2]}")
    a(f"v_max3_f32 v41, {m[3]}, {m[4]}, {m[5]}")
    a(f"v_max3_f32 v40, v40, {m[6]}, {m[7]}")
    a("v_max_f32 v40, v40, v41")
    tag("v40", "v40")
    for w in range(8): a(f"v_sub_f32 {m[w]}, {m[w]}, v40")
    for w in range(8): a(f"v_exp_f32 {m[w]}, {m[w]}")
    a("s_waitcnt lgkmcnt(0)")
    for t in range(4):
        trread(ACC + 4*t, "v47", WO + t*32, 128)
    a(f"v_mul_f32 v42, {m[0]}, v32")
    a(f"v_mul_f32 v43, {m[1]}, v33")
    a(f"v_mul_f32 v41, {m[0]}, {lw[0]}")
    for w in range(2, 8):
        a(f"v_fmac_f32 v{42 + (w & 1)}, {m[w]}, v{32+w}")
    a("v_add_f32 v42, v42, v43")
    tag("v42", "v42")
    for w in range(1, 8):
        a(f"v_fmac_f32 v41, {m[w]}, {lw[w]}")
    tag("v41", "v41")
    l1, l2 = lab("slow"), lab("back")
    a(f"s_cmp_eq_u32 {sFAST}, 0")
    a(f"s_cbranch_scc1 {l1}")
    def ra_stores(fl):
        a(f"global_store_dword {aRA}, v42, {sLB}{fl}")
        lx = lab("noml")
        a(f"s_cmp_eq_u32 {sW}, 0")
        a(f"s_cbranch_scc0 {lx}")
        a("s_mov_b64 exec, 0xf")
        a(f"global_store_dwordx2 {aRML}, v[40:41], {sLB}{fl}")
        a("s_mov_b64 exec, -1")
        a(f"{lx}:")
    ra_stores("")
    a(f"{l2}:")
    ool.append((l1, l2, ra_stores))
    stamp("RA_st")
    loads = [f"global_load_dwordx2 v[40:41], {aOML}, {sLB} sc1",
             f"global_load_dwordx4 v[32:35], {aOG}, {sLB} sc1",
             f"global_load_dwordx4 v[36:39], {aOG}, {sLB} offset:16 sc1"]
    poll(loads, ["v32", "v36", "v40", "v41"], 44)
    stamp("O_got")
    a("v_max_f32_dpp v42, v40, v40 row_ror:1 row_mask:0xf bank_mask:0xf")
    for r in (2, 4, 8):
        a(f"v_max_f32_dpp v42, v42, v42 row_ror:{r} row_mask:0xf bank_mask:0xf")
    a("v_sub_f32 v40, v40, v42")
    a("v_exp_f32 v40, v40")
    a("v_mul_f32 v41, v41, v40")
    for r in (1, 2, 4, 8):
        a(f"v_add_f32_dpp v41, v41, v41 row_ror:{r} row_mask:0xf bank_mask:0xf")
    a("v_rcp_f32 v41, v41")
    a("v_mul_f32 v44, v40, v41")
    a("v_mov_b32 v45, v44")
    a("v_permlane16_swap_b32 v44, v45")
    a("v_mov_b32 v46, v44")
    a("v_mov_b32 v47, v45")
    a("v_permlane32_swap_b32 v44, v46")
    a("v_permlane32_swap_b32 v45, v47")
    a("v_pk_mul_f32 v[32:33], v[32:33], v[44:45]")
    a("v_pk_mul_f32 v[34:35], v[34:35], v[46:47]")
    a("v_pk_mul_f32 v[36:37], v[36:37], v[44:45]")
    a("v_pk_mul_f32 v[38:39], v[38:39], v[46:47]")
    for i in range(4): a(f"v_cvt_pk_bf16_f32 v{40+i}, v{32+2*i}, v{33+2*i}")
    a("s_waitcnt lgkmcnt(0)")
    DO = ACC + 16
    for t in range(4):
        a(f"v_mfma_f32_16x16x32_bf16 {vr(DO+4*t)}, v[40:43], {vr(ACC+4*t)}, 0")
    a(f"s_lshl_b32 {sT1}, {sW}, 8")
    a(f"v_add_u32 v46, {sT1}, {lL4}")
    for t in range(4):
        a(f"v_pk_add_f32 {vr(DO+4*t,2)}, {vr(DO+4*t,2)}, {vr(DO+4*t+2,2)}")
    for t in range(4):
        a(f"v_add_f32 v{32+t}, v{DO+4*t}, v{DO+4*t+1}")
    a("v_permlane32_swap_b32 v32, v34")
    a("v_permlane32_swap_b32 v33, v35")
    a("v_add_f32 v32, v32, v34")
    a("v_add_f32 v33, v33, v35")
    a("v_permlane16_swap_b32 v32, v33")
    a("v_add_f32 v32, v32, v33")
    a(f"ds_write_b32 v46, v32 offset:{OS}")
    a(f"s_and_b32 {sT1}, {sW}, 3")
    a(f"s_lshl_b32 {sT1}, {sT1}, 5")
    a(f"s_lshr_b32 {sT2}, {sW}, 2")
    a(f"s_lshl_b32 {sT2}, {sT2}, 13")
    a(f"s_add_u32 {sT1}, {sT1}, {sT2}")
    a(f"v_add_u32 v47, {sT1}, {lTR128}")
    a("s_waitcnt lgkmcnt(0)")
    a("s_barrier")
    a(f"s_cmp_gt_u32 {sW}, 1")
    a("s_cbranch_scc1 Lo2")
    a(f"s_lshl_b32 {sT1}, {sW}, 10")
    a(f"v_add_u32 v46, {sT1}, {lL4}")
    a(f"ds_read2st64_b32 v[32:33], v46 offset0:{OS//256} offset1:{OS//256+1}")
    a(f"ds_read2st64_b32 v[34:35], v46 offset0:{OS//256+2} offset1:{OS//256+3}")
    a("s_waitcnt lgkmcnt(0)")
    a("v_pk_add_f32 v[32:33], v[32:33], v[34:35]")
    a("v_add_f32 v32, v32, v33")
    tag("v32", "v32")
    a(f"global_store_dword {aRO}, v32, {sLB} sc1")
    a("Lo2:")
    for j in range(2):
        trread(ACC + 4*j, "v47", W1 + j*4096, 128)
    stamp("RO_st")
    a("s_waitcnt vmcnt(0)")
    a("s_barrier")
    stamp("B4")
    def xg(base, first):
        loads = [f"global_load_dwordx4 {vr(32+4*i)}, {aXG}, {base} offset:{512*i} sc1" for i in range(4)]
        poll(loads, ["v32", "v36", "v40", "v44"], 48)
        stamp("F1_got" if first else "Q_got")
        a("v_pk_add_f32 v[32:33], v[32:33], v[36:37]")
        a("v_pk_add_f32 v[34:35], v[34:35], v[38:39]")
        a("v_pk_add_f32 v[40:41], v[40:41], v[44:45]")
        a("v_pk_add_f32 v[42:43], v[42:43], v[46:47]")
        a("v_pk_add_f32 v[32:33], v[32:33], v[40:41]")
        a("v_pk_add_f32 v[34:35], v[34:35], v[42:43]")
        treduce("v32", "v33", "v34", "v35")
        a(f"v_add_f32 v32, v32, {vX}")
        a("v_cvt_pk_bf16_f32 v32, v32, v32")
        a(f"v_and_b32 {vX}, 0xffff0000, v32")
    a(f"s_cmp_gt_u32 {sW}, 3")
    a("s_cbranch_scc1 LB5")
    xg(sLB, True)
    a(f"ds_write_b16 {lXW}, v32")
    a(f"s_or_b32 {sT1}, s2, {sW}")
    a(f"s_or_b32 {sT1}, {sT1}, {sLAYER}")
    a(f"s_cmp_eq_u32 {sT1}, 0")
    a("s_cbranch_scc0 LB5")
    a(f"v_mov_b32 v33, {hex(E_OFF)}")
    a("s_mov_b64 exec, 1")
    a(f"global_store_dword v33, {vTAG}, s[22:23] sc1")
    a("s_mov_b64 exec, -1")
    a("LB5:")
    a("s_waitcnt lgkmcnt(0)")
    a("s_barrier")
    a(f"s_cmp_gt_u32 {sW}, 4")
    a("s_cbranch_scc1 LB6")
    a(f"ds_read_b128 v[32:35], {lXR}")
    a(f"ds_read_b128 v[36:39], {lXR} offset:64")
    a(f"s_cmp_eq_u32 {sW}, 4")
    a("s_cbranch_scc0 Lf1t")
    a("s_waitcnt lgkmcnt(0)")
    a("v_mfma_f32_16x16x32_bf16 v[40:43], v[32:35], v[32:35], 0")
    a("v_mfma_f32_16x16x32_bf16 v[40:43], v[36:39], v[36:39], v[40:43]")
    stats_words(40, 44)
    a("s_mov_b64 exec, 3")
    intra_stores([f"global_store_dwordx4 {aSTW}, v[44:47], {sLB}"])
    a("s_mov_b64 exec, -1")
    a("s_branch LB6")
    a("Lf1t:")
    a("s_waitcnt lgkmcnt(0)")
    a(f"v_mfma_f32_16x16x32_bf16 v[40:43], v[32:35], {vr(ACC)}, 0")
    a(f"v_mfma_f32_16x16x32_bf16 v[40:43], v[36:39], {vr(ACC+4)}, v[40:43]")
    for k in range(3): tag(f"v{40+k}", f"v{40+k}")
    a("s_mov_b64 exec, 0xffff")
    intra_stores([f"global_store_dword {aF1S}, v{40+k}, {sLB} offset:{2048*(k-1)}" for k in range(3)])
    a("s_mov_b64 exec, -1")
    stamp("F1_st")
    a(f"s_lshr_b32 {sT1}, {sW}, 1")
    a(f"s_lshl_b32 {sT1}, {sT1}, 11")
    a(f"v_add_u32 v52, {sT1}, {aF2G}")
    loads = [f"global_load_dwordx4 v[48:51], {aF2T}, {sLB} sc1",
             f"global_load_dwordx4 v[32:35], v52, {sLB} offset:-2048 sc1",
             f"global_load_dwordx4 v[36:39], {aF2G}, {sLB} offset:2048 sc1"]
    poll(loads, ["v32", "v36", "v48", "v49", "v50", "v51"], 53)
    stamp("F2_got")
    ln_stats(48, "v52", "v53")
    treduce("v32", "v33", "v34", "v35")
    treduce("v36", "v37", "v38", "v39")
    a("v_fma_f32 v32, -v52, v36, v32")
    a("v_mul_f32 v32, v32, v53")
    a(f"v_mul_f32 v33, {fbits(-1.4426950408889634)}, v32")
    a("v_exp_f32 v33, v33")
    a("v_add_f32 v33, 1.0, v33")
    a("v_rcp_f32 v33, v33")
    a("v_mul_f32 v32, v32, v33")
    a("v_cvt_pk_bf16_f32 v32, v32, v32")
    a(f"v_and_b32 v32, {sHMASK}, v32")
    a(f"ds_write_b16 {lXW}, v32 offset:{HB - XB}")
    a("LB6:")
    a("s_waitcnt lgkmcnt(0)")
    a("s_barrier")
    a(f"s_cmp_lt_u32 {sW}, 4")
    a("s_cbranch_scc1 Lf2e")
    a(f"ds_read_b128 v[32:35], {lXR} offset:{HB - XB}")
    a(f"ds_read_b128 v[36:39], {lXR} offset:{HB - XB + 64}")
    a("s_waitcnt lgkmcnt(0)")
    a(f"v_mfma_f32_16x16x32_bf16 v[40:43], v[32:35], {vr(ACC)}, 0")
    a(f"v_mfma_f32_16x16x32_bf16 v[40:43], v[36:39], {vr(ACC+4)}, v[40:43]")
    for k in range(2): tag(f"v{40+k}", f"v{40+k}")
    a("s_mov_b64 exec, 0xffff")
    a(f"global_store_dword {aF2S}, v40, {sLB} sc1")
    a(f"global_store_dword {aF2S}, v41, {sLB} offset:256 sc1")
    a("s_mov_b64 exec, -1")
    a("Lf2e:")
    stamp("F2_st")
    a(f"s_cmp_eq_u32 {sLAYER}, 0")
    a("s_cbranch_scc1 Lf2c")
    a(f"s_or_b32 {sT1}, {sG}, {sSIG}")
    a(f"s_cmp_eq_u32 {sT1}, 0")
    a("s_cbranch_scc0 Lfin")
    a("Lf2c:")
    a(f"v_and_b32 v47, 0xffffff80, {lTR128}")
    a(f"v_add_u32 v47, v47, {lTR128}")
    a(f"s_lshl_b32 {sT1}, {sW}, 5")
    a(f"v_add_u32 v47, {sT1}, v47")
    for j in range(2):
        trread(ACC + 8 + 4*j, "v47", WQ + j*8192, 256)
    a("s_waitcnt vmcnt(0)")
    a("s_barrier")
    stamp("B7")
    a(f"s_cmp_gt_u32 {sW}, 3")
    a("s_cbranch_scc1 LB8")
    xg(sLB2, False)
    a(f"ds_write_b16 {lXW}, v32")
    a(f"s_cmp_eq_u32 {sLAYER}, 0")
    a("s_cbranch_scc1 LB8")
    a(f"v_subrev_u32 v33, {XB}, {lXW}")
    a(f"s_lshr_b32 {sT1}, {sW}, 1")
    a(f"s_mul_i32 {sT1}, {sT1}, {1024 - 144}")
    a(f"s_lshl_b32 {sT2}, {sBETA}, 7")
    a(f"s_add_u32 {sT1}, {sT1}, {sT2}")
    a(f"v_add_u32 v33, {sT1}, v33")
    a("s_mov_b32 exec_lo, 0x00ff00ff")
    a("s_mov_b32 exec_hi, 0x00ff00ff")
    a("global_store_short v33, v32, s[20:21]")
    a("s_mov_b64 exec, -1")
    a("LB8:")
    a(f"s_cmp_eq_u32 {sLAYER}, 0")
    a("s_cbranch_scc0 Lfin")
    a("s_waitcnt lgkmcnt(0)")
    a("s_barrier")
    a(f"ds_read_b128 v[32:35], {lXR}")
    a(f"ds_read_b128 v[36:39], {lXR} offset:64")
    a(f"s_add_u32 s50, s50, {LSTRIDE}")
    a("s_addc_u32 s51, s51, 0")
    a(f"s_add_u32 s52, s52, {LSTRIDE}")
    a("s_addc_u32 s53, s53, 0")
    a(f"v_add_u32 v52, 0x4000, {aQW}")
    a(f"s_or_b32 {sT1}, {sW}, {sSIG}")
    a(f"s_cmp_eq_u32 {sT1}, 0")
    a("s_waitcnt lgkmcnt(0)")
    a(f"v_mfma_f32_16x16x32_bf16 v[40:43], v[32:35], {vr(ACC+8)}, 0")
    a(f"v_mfma_f32_16x16x32_bf16 v[40:43], v[36:39], {vr(ACC+12)}, v[40:43]")
    a("s_cbranch_scc0 Lqm1")
    a("v_mfma_f32_16x16x32_bf16 v[48:51], v[32:35], v[32:35], 0")
    a("v_mfma_f32_16x16x32_bf16 v[48:51], v[36:39], v[36:39], v[48:51]")
    stats_words(48, 44)
    a("s_mov_b64 exec, 3")
    intra_stores([f"global_store_dwordx4 {aSTW}, v[44:47], {sLB}"])
    a("s_mov_b64 exec, -1")
    a("Lqm1:")
    for k in range(2): tag(f"v{40+k}", f"v{40+k}")
    a("s_mov_b64 exec, 0xffff")
    intra_stores([f"global_store_dword {aQW}, v40, {sLB}", f"global_store_dword v52, v41, {sLB}"])
    a("s_mov_b64 exec, -1")
    stamp("Q_st")
    flush_stamps()
    a(f"s_mov_b32 {sLAYER}, 1")
    a("s_branch LOOP")
    a("Lfin:")
    if diag:
        a("s_memrealtime s[98:99]")
        flush_stamps()
        a(f"v_writelane_b32 {vST}, s98, 34")
        a(f"v_writelane_b32 {vST}, {sFAST}, 35")
        a(f"s_lshl_b32 {sT1}, s2, 3")
        a(f"s_add_u32 {sT1}, {sT1}, {sW}")
        a(f"s_lshl_b32 {sT1}, {sT1}, 8")
        a(f"s_add_u32 {sT1}, {sT1}, {TS_OFF}")
        a(f"v_add_u32 v33, {sT1}, {lL4}")
        a(f"global_store_dword v33, {vST}, s[22:23]")
    a("Lexit:")
    a("s_endpgm")
    for (l1, l2, st) in ool:
        a(f"{l1}:")
        if callable(st): st(" sc1")
        else:
            for s in st: a(s + " sc1")
        a(f"s_branch {l2}")
    a.raw('.section .rodata,"a"')
    a.raw(".p2align 6")
    a.raw(f".amdhsa_kernel {NAME}")
    a.raw("  .amdhsa_next_free_vgpr 256")
    a.raw("  .amdhsa_next_free_sgpr 102")
    a.raw("  .amdhsa_accum_offset 192")
    a.raw("  .amdhsa_group_segment_fixed_size 0")
    a.raw("  .amdhsa_kernarg_size 88")
    a.raw("  .amdhsa_user_sgpr_count 2")
    a.raw("  .amdhsa_user_sgpr_kernarg_segment_ptr 1")
    a.raw("  .amdhsa_system_sgpr_workgroup_id_x 1")
    a.raw(".end_amdhsa_kernel")
    return a.text(), stamps

HEADER = open("interleave_layers__gqa_block_cached__dense_activation_silu__decode.s.ref").read().split("; Override launch")[0] if __name__ == "__main__" else ""

if __name__ == "__main__":
    t, st = gen(False)
    open("main.s", "w").write(HEADER + t)
    t, st = gen(True)
    open("main_diag.s", "w").write(HEADER + t)
    print(st, "LDS", LDS_BYTES)
```
